```python
import torch

def _softmax(x, axis=-1):
    return torch.softmax(x, dim=axis)

def _gelu(x):
    return torch.nn.functional.gelu(x, approximate='tanh')

def _silu(x):
    return torch.nn.functional.silu(x)

def _sigmoid(x):
    return torch.sigmoid(x)

def _layernorm(x, axis=-1, eps=1e-05):
    m = x.mean(dim=axis, keepdim=True)
    v = x.var(dim=axis, keepdim=True, unbiased=False)
    return (x - m) / torch.sqrt(v + eps)

def _scatter_add(tgt, idx, src, axis=0):
    return tgt.clone().index_add_(axis, idx, src)

def _segment_sum(src, seg, n):
    out = torch.zeros((n,) + src.shape[1:], dtype=src.dtype)
    return out.index_add_(0, seg, src)

def _pad(x, pw):
    flat = tuple((v for pair in reversed(pw) for v in pair))
    return torch.nn.functional.pad(x, flat)
kernel_name = 'adaLN_cond__memory_aug_recurrent_mem_tr__dense_activation_relu__prompt'

def setup_inputs():

    _w = lambda a: (lambda t: t.to(torch.bfloat16) if t.is_floating_point() else t)(torch.as_tensor(a))

    def _A_setup():
        B, S, Dm = (1, 2048, 512)
        H, Dh = (32, 128)
        M, seg = (8, 32)
        seg = min(seg, S)
        S = S // seg * seg
        return {'x': _w((lambda *s: torch.randn(*s, dtype=torch.bfloat16) * 0.05)(B, S, Dm)), 'mem0': _w((lambda *s: torch.randn(*s, dtype=torch.bfloat16) * 0.4)(B, M, Dm)), 'Wq': _w((lambda *s: torch.randn(*s, dtype=torch.bfloat16) * 3.2)(Dm, H, Dh) * Dm ** (-0.5)), 'Wk': _w((lambda *s: torch.randn(*s, dtype=torch.bfloat16) * 3.2)(Dm, H, Dh) * Dm ** (-0.5)), 'Wv': _w((lambda *s: torch.randn(*s, dtype=torch.bfloat16) * 0.4)(Dm, H, Dh) * Dm ** (-0.5)), 'Wo': _w((lambda *s: torch.randn(*s, dtype=torch.bfloat16) * 0.4)(H, Dh, Dm) * (H * Dh) ** (-0.5)), 'seg_len': seg}
    _A_in = _A_setup()

    def _B_setup():
        B, S, D, Dff = (1, 2048, 512, 1792)
        return {'x': _w((lambda *s: torch.randn(*s, dtype=torch.bfloat16) * 0.05)(B, S, D)), 'w1': _w((lambda *s: torch.randn(*s, dtype=torch.bfloat16) * 0.05)(D, Dff)), 'w2': _w((lambda *s: torch.randn(*s, dtype=torch.bfloat16) * 0.05)(Dff, D))}
    _B_in = _B_setup()
    return {'A_x': _A_in['x'], 'A_mem0': _A_in['mem0'], 'A_Wq': _A_in['Wq'], 'A_Wk': _A_in['Wk'], 'A_Wv': _A_in['Wv'], 'A_Wo': _A_in['Wo'], 'A_seg_len': _A_in['seg_len'], 'B_x': _B_in['x'], 'B_w1': _B_in['w1'], 'B_w2': _B_in['w2'], 'c': _w((lambda *s: torch.randn(*s, dtype=torch.bfloat16) * 0.1)(1, 512) * 8.0), 'w_mod': _w((lambda *s: torch.randn(*s, dtype=torch.bfloat16) * 0.1)(512, 6 * 512) * 512 ** (-0.5) * 8.0)}

def reference(A_x, A_mem0, A_Wq, A_Wk, A_Wv, A_Wo, A_seg_len, B_x, B_w1, B_w2, c, w_mod):

    def _A_ref(x, mem0, Wq, Wk, Wv, Wo, seg_len):
        B, S, Dm = x.shape
        H, Dh = (Wq.shape[1], Wq.shape[2])
        M = mem0.shape[1]
        scale = Dh ** (-0.5)
        n_seg = S // seg_len
        L = M + seg_len
        idx = torch.arange(L)
        mask = (idx[:, None] < M) | (idx[:, None] >= idx[None, :])
        mem = mem0
        outs = []
        for s in range(n_seg):
            xs = x[:, s * seg_len:(s + 1) * seg_len, :].clone()
            h = torch.concatenate([mem, xs], axis=1)
            q = torch.einsum('btd,dhe->bhte', h, Wq)
            k = torch.einsum('btd,dhe->bhte', h, Wk)
            v = torch.einsum('btd,dhe->bhte', h, Wv)
            scores = torch.einsum('bhqe,bhke->bhqk', q, k) * scale
            scores = torch.where(mask[None, None], scores, -1000000000.0)
            p = _softmax(scores, axis=-1)
            o = torch.einsum('bhqk,bhke->bhqe', p, v)
            o = torch.einsum('bhte,hed->btd', o, Wo)
            mem = o[:, :M, :].clone()
            outs.append(o[:, M:, :])
        return torch.concatenate(outs, axis=1)

    def _B_ref(x, w1, w2):
        h = torch.einsum('bsd,df->bsf', x, w1)
        zero = torch.zeros_like(h)
        h = torch.maximum(h, zero)
        return torch.einsum('bsf,fd->bsd', h, w2)
    x = A_x
    mod = (_silu(c) @ w_mod).reshape(c.shape[0], 6, 1, -1)
    sa, ca, ga, sb, cb, gb = (mod[:, 0].clone(), mod[:, 1].clone(), mod[:, 2].clone(), mod[:, 3].clone(), mod[:, 4].clone(), mod[:, 5].clone())
    h = _layernorm(x, axis=-1) * (1 + ca) + sa
    x = x + ga * _A_ref(h, A_mem0, A_Wq, A_Wk, A_Wv, A_Wo, A_seg_len)
    h = _layernorm(x, axis=-1) * (1 + cb) + sb
    x = x + gb * _B_ref(h, B_w1, B_w2)
    return x
```

```python
import sys
from bh import *
W32='ds_write_b32 v72, v1'; W32b='ds_write_b32 v72, v1 offset:2048'; R128='ds_read_b128 v[8:11], v70 offset:4096'; R128b='ds_read_b128 v[12:15], v70 offset:8192'
M64=[f'v_mov_b64 v[{20+2*i}:{21+2*i}], 0' for i in range(10)]; M32=[f'v_mov_b32 v{20+i}, 0' for i in range(10)]
SMF='v_smfmac_f32_16x16x64_bf16 v[44:47], v[4:7], v[48:55], v16'
CV='v_cvt_pk_bf16_f32 v1, v2, v3'
ST2='global_store_dwordx2 v71, v[2:3], s[4:5]'
TR=lambda i:f'ds_read_b64_tr_b16 v[{20+2*i}:{21+2*i}], v71 offset:{4096+512*i}'
AD='v_add_f32 v40, v41, v42'
seqs={
 'sm x4':[SMF]*4,
 'sm tr tr x4':[SMF,TR(0),TR(1),SMF,TR(2),TR(3),SMF,TR(4),TR(5),SMF,TR(6),TR(7)],
 'sm tr x4':[SMF,TR(0),SMF,TR(2),SMF,TR(4),SMF,TR(6)],
 'sm tr tr tr sm sm sm':[SMF,TR(0),TR(1),TR(2),SMF,SMF,SMF],
 'sm tr tr ad x2 sm sm':[SMF,TR(0),TR(1),AD,SMF,TR(2),TR(3),AD,SMF,SMF],
 'sm w n1 sm w n0 sm sm':[SMF,W32,'s_nop 1',SMF,W32b,'s_nop 0',SMF,SMF],
 'sm w n0 sm sm sm':[SMF,W32,'s_nop 0',SMF,SMF,SMF],
 'sm n0 w sm sm sm':[SMF,'s_nop 0',W32,SMF,SMF,SMF],
 'sm n1 w sm sm sm':[SMF,'s_nop 1',W32,SMF,SMF,SMF],
 'sm r ad x4':[SMF,R128,AD]*4,
 'sm r n0 ad x4':[SMF,R128,'s_nop 0',AD]*4,
 'sm r n1 x4':[SMF,R128,'s_nop 1']*4,
 'sm r n0 ad x2 sm sm':[SMF,R128,'s_nop 0',AD]*2+[SMF,SMF],
 'sm r m64 x4':[SMF,R128,M64[0]]*4,
 'sm cmp sm sm sm':[SMF,'v_cmp_eq_u32 vcc, -1, v1',SMF,SMF,SMF],
 'sm cmp sm sm br sm':[SMF,'v_cmp_eq_u32 vcc, -1, v1',SMF,SMF,'s_cbranch_vccnz L_loop',SMF],
 'sm br sm sm sm':[SMF,'s_cbranch_vccnz L_loop',SMF,SMF,SMF],
 'sm max3 x4':[SMF,'v_max3_u32 v1, v1, v2, v3']*4,
 'sm dma tr tr sm sm sm':[SMF,'global_load_lds_dwordx4 v70, s[4:5] sc1',TR(0),TR(1),SMF,SMF,SMF],
 'sm ld ld sm sm sm':[SMF,'global_load_dwordx4 v[60:63], v70, s[4:5] sc1','global_load_dwordx4 v[60:63], v70, s[4:5] sc1',SMF,SMF,SMF,SMF,SMF,SMF,SMF],
 'sm wait bar r sm sm sm':[SMF,'s_waitcnt vmcnt(0)','s_barrier',R128,SMF,SMF,SMF],
 'ad r ad ad':[AD,R128,AD,AD,AD,AD,AD,AD],
 'mf r cv ad ad':['v_mfma_f32_16x16x16_bf16 v[44:47], v[4:5], v[6:7], 0',R128,CV,AD,AD],
 'mf cv ad ad':['v_mfma_f32_16x16x16_bf16 v[44:47], v[4:5], v[6:7], 0',CV,AD,AD],
 'pk->dpp etc':['v_pk_mul_f32 v[20:21], v[22:23], v[24:25]','v_pk_fma_f32 v[26:27], v[26:27], v[24:25], v[20:21]','v_pk_fma_f32 v[28:29], v[28:29], v[24:25], v[20:21]','v_exp_f32 v26, v26'],
 'pk cvt':['v_pk_mul_f32 v[20:21], v[22:23], v[24:25]','v_cvt_pk_bf16_f32 v26, v20, v21'],
}
def gen_time(seq, N=1000, nw=1, bar=False):
    L=[]; e=L.append
    e('s_load_dwordx4 s[4:7], s[0:1], 0')
    e('s_waitcnt lgkmcnt(0)')
    e('v_lshlrev_b32 v70, 4, v0'); e('v_lshlrev_b32 v71, 3, v0'); e('v_lshlrev_b32 v72, 2, v0')
    for r in range(1,64): e(f'v_mov_b32 v{r}, 0')
    e('v_mov_b32 v16, 0x44444444'); e('s_mov_b32 m0, 0')
    e('s_mov_b32 s16, 0'); e('s_mov_b64 vcc, 0')
    e('s_memtime s[22:23]')
    e('L_loop:')
    for i in range(8):
        for x in seq: e(x)
        if bar: e('s_waitcnt lgkmcnt(0)'); e('s_nop 15'); e('s_barrier')
    e('s_add_u32 s16, s16, 1'); e(f's_cmp_lt_u32 s16, {N}'); e('s_cbranch_scc1 L_loop')
    e('s_memtime s[24:25]'); e('s_waitcnt lgkmcnt(0)')
    e('s_sub_u32 s24, s24, s22'); e('v_mov_b32 v1, 0'); e('v_mov_b32 v2, s24')
    e('global_store_dword v1, v2, s[6:7]')
    return wrap('\n'.join(L), g=1, b=64*nw, nv=512, ao=256, lds=32768)
if __name__=='__main__':
    tk=[(k,w) for k in seqs for w in (1,4)]
    if len(sys.argv)>1 and sys.argv[1]=='asm':
        for k,w in tk: build(gen_time(seqs[k],nw=w),'bench_kernel',3,'x')
        print('ok'); sys.exit()
    inb=cl.DeviceBuffer(1<<20); out=cl.DeviceBuffer(1<<20); dbg=cl.DeviceBuffer(256)
    for kind,w in tk:
        k,g,b,lds=load(gen_time(seqs[kind],nw=w),'bench_kernel',3,'x')
        for rep in range(2):
            k.launch(g,b,cl.pack_ptr_kernargs([inb.ptr,out.ptr,dbg.ptr]),lds); sync()
        o=download(out,np.uint32,(2,))
        print(kind,'waves',w,round(o[0]/8000-4,1))
        k.unload()
```

```python
import sys
from bh import *
def prologue(e, nteam, target=0):
    e('s_load_dwordx4 s[4:7], s[0:1], 0')
    e('s_load_dwordx2 s[8:9], s[0:1], 16')
    e('s_getreg_b32 s10, hwreg(HW_REG_XCC_ID, 0, 4)')
    e('v_lshrrev_b32 v1, 6, v0')
    e('s_nop 1')
    e('v_readfirstlane_b32 s11, v1')
    e('v_and_b32 v2, 63, v0')
    e('s_waitcnt lgkmcnt(0)')
    e(f's_cmp_lg_u32 s10, {target}'); e('s_cbranch_scc1 L_end')
    e('s_cmp_lg_u32 s11, 0'); e('s_cbranch_scc1 L_skipat')
    e('v_mov_b32 v3, 0'); e('v_mov_b32 v4, 1')
    e('s_mov_b64 s[20:21], exec'); e('s_mov_b64 exec, 1')
    e('global_atomic_add v5, v3, v4, s[8:9] sc0')
    e('s_waitcnt vmcnt(0)')
    e('ds_write_b32 v3, v5')
    e('s_waitcnt lgkmcnt(0)')
    e('s_mov_b64 exec, s[20:21]')
    e('L_skipat:')
    e('s_barrier')
    e('v_mov_b32 v3, 0'); e('ds_read_b32 v5, v3'); e('s_waitcnt lgkmcnt(0)')
    e('s_nop 1'); e('v_readfirstlane_b32 s13, v5')
    e('s_barrier')
    e(f's_cmp_ge_u32 s13, {nteam}'); e('s_cbranch_scc1 L_end')
def report(e):
    e('s_memtime s[24:25]'); e('s_waitcnt lgkmcnt(0)')
    e('s_sub_u32 s24, s24, s22')
    e('s_branch L_rep')
    e('L_fail:')
    e('s_mov_b32 s24, -1')
    e('L_rep:')
    e('s_lshl_b32 s14, s13, 4'); e('v_mov_b32 v3, s14'); e('v_mov_b32 v4, s24'); e('v_mov_b32 v5, s30'); e('v_mov_b32 v6, s31'); e('v_mov_b32 v7, s16')
    e('global_store_dwordx4 v3, v[4:7], s[6:7]')
    e('L_end:')
def gen_load(nteam, nwaves, nloads, ldf, N, shared=False, width=4, store=False, lanes=64):
    L=[]; e=L.append
    prologue(e,nteam)
    e(f's_cmp_ge_u32 s11, {nwaves}'); e('s_cbranch_scc1 L_end')
    e(f'v_lshlrev_b32 v10, {2 if width==1 else 3 if width==2 else 4}, v2')
    e(f's_mul_i32 s14, s11, {nloads*1024}')
    if not shared:
        e('s_lshl_b32 s15, s13, 16'); e('s_add_u32 s14, s14, s15')
    e('v_add_u32 v10, s14, v10')
    for t in range(1,nloads): e(f'v_add_u32 v{10+t}, {t*1024}, v10')
    e('s_mov_b32 s30, 0'); e('s_mov_b32 s31, 0'); e('s_mov_b32 s16, 0')
    sfx={1:'dword',2:'dwordx2',4:'dwordx4'}[width]
    def reg(t): return f'v{32+4*t}' if width==1 else f'v[{32+4*t}:{32+4*t+width-1}]'
    for t in range(nloads): e(f'global_load_{sfx} {reg(t)}, v{10+t}, s[4:5] {ldf if not store else ""}')
    e('s_waitcnt vmcnt(0)')
    if lanes<64: e(f's_mov_b64 exec, {(1<<lanes)-1}')
    e('s_memtime s[22:23]')
    e('L_loop:')
    for t in range(nloads):
        if store: e(f'global_store_{sfx} v{10+t}, {reg(t)}, s[4:5] {ldf}')
        else: e(f'global_load_{sfx} {reg(t)}, v{10+t}, s[4:5] {ldf}')
    e('s_waitcnt vmcnt(0)')
    e('s_add_u32 s16, s16, 1'); e(f's_cmp_lt_u32 s16, {N}'); e('s_cbranch_scc1 L_loop')
    e('s_mov_b64 exec, -1')
    report(e)
    return wrap('\n'.join(L), g=256, b=256, lds=100000)
def gen_pp(stf, ldf, N, pipelined=0):
    L=[]; e=L.append
    prologue(e,2)
    e(f's_cmp_ge_u32 s11, 1'); e('s_cbranch_scc1 L_end')
    e('s_lshl_b32 s14, s13, 12'); e('v_mov_b32 v10, s14')
    e('s_xor_b32 s14, s14, 4096'); e('v_mov_b32 v11, s14')
    e('s_mov_b32 s30, 0'); e('s_mov_b32 s31, 0'); e('s_mov_b32 s16, 1')
    e('s_mov_b64 exec, 1')
    e('s_memtime s[22:23]')
    e('L_loop:')
    e('s_cmp_eq_u32 s13, 0'); e('s_cbranch_scc0 L_w1')
    e('v_mov_b32 v12, s16'); e(f'global_store_dword v10, v12, s[4:5] {stf}')
    e('L_w1:')
    e('s_mov_b32 s17, 0')
    e('L_p:')
    e(f'global_load_dword v13, v11, s[4:5] {ldf}')
    e('s_add_u32 s17, s17, 1'); e('s_cmp_gt_u32 s17, 20000'); e('s_cbranch_scc1 L_fail')
    e('s_waitcnt vmcnt(0)')
    e('v_cmp_ne_u32 vcc, s16, v13'); e('s_cbranch_vccnz L_p')
    e('s_add_u32 s30, s30, s17')
    e('s_cmp_eq_u32 s13, 0'); e('s_cbranch_scc1 L_w2')
    e('v_mov_b32 v12, s16'); e(f'global_store_dword v10, v12, s[4:5] {stf}')
    e('L_w2:')
    e('s_add_u32 s16, s16, 1'); e(f's_cmp_le_u32 s16, {N}'); e('s_cbranch_scc1 L_loop')
    e('s_mov_b64 exec, -1')
    report(e)
    return wrap('\n'.join(L), g=256, b=256, lds=100000)
if __name__=='__main__':
    N=2000
    cases=[]
    for nteam in (1,32):
        for nw,nl in ((1,1),(1,2),(1,4),(4,1),(4,2),(4,4)):
            cases.append((f'load sc1 team{nteam} waves{nw} loads{nl}', gen_load(nteam,nw,nl,'sc1',N), nteam))
    cases.append(('load sc1 team1 1 lane dword', gen_load(1,1,1,'sc1',N,width=1,lanes=1),1))
    cases.append(('load plain(L1) team1 1 lane dword', gen_load(1,1,1,'',N,width=1,lanes=1),1))
    cases.append(('load plain(L1) team1 w1 l1 x4', gen_load(1,1,1,'',N),1))
    cases.append(('load sc1 shared team32 w4 l2', gen_load(32,4,2,'sc1',N,shared=True),32))
    cases.append(('load nt shared team32 w4 l2', gen_load(32,4,2,'nt',N,shared=True),32))
    for nteam in (1,32):
        for nw,nl in ((1,1),(4,1),(4,4)):
            cases.append((f'store plain team{nteam} waves{nw} n{nl}', gen_load(nteam,nw,nl,'',N,store=True), nteam))
    cases.append(('store plain 1 lane dword', gen_load(1,1,1,'',N,width=1,lanes=1,store=True),1))
    cases.append(('store sc1 1 lane dword', gen_load(1,1,1,'sc1',N,width=1,lanes=1,store=True),1))
    cases.append(('store nt 1 lane dword', gen_load(1,1,1,'nt',N,width=1,lanes=1,store=True),1))
    cases.append(('pingpong plain/sc1', gen_pp('','sc1',N),2))
    cases.append(('pingpong plain/nt', gen_pp('','nt',N),2))
    cases.append(('pingpong sc1/sc1', gen_pp('sc1','sc1',N),2))
    if len(sys.argv)>1 and sys.argv[1]=='asm':
        for n,a,t in cases: build(a,'bench_kernel',3,'x')
        print('ok'); sys.exit()
    ws=cl.DeviceBuffer(4<<20); out=cl.DeviceBuffer(4096); dbg=cl.DeviceBuffer(256)
    for name,asm,nteam in cases:
        k,g,b,lds=load(asm,'bench_kernel',3,'x')
        for rep in range(2):
            memset(ws,0); memset(out,0); memset(dbg,0); sync()
            k.launch(g,b,cl.pack_ptr_kernargs([ws.ptr,out.ptr,dbg.ptr]),lds)
            sync()
            o=download(out,np.uint32,(1024,))
            r=o[:4*nteam].reshape(nteam,4)
        print(name,'cyc/iter max',r[:,0].max()/N,'min',r[:,0].min()/N,'polls',r[:,1].mean()/N)
        k.unload()
```

```python
import sys
from bh import *
from mb_lat import prologue
def gen(kind, nop=72, idle=120, sleep=False, N=300, amode='rand', allx=False):
    L=[]; e=L.append
    if allx:
        e('s_load_dwordx4 s[4:7], s[0:1], 0'); e('v_lshrrev_b32 v1, 6, v0'); e('s_nop 1'); e('v_readfirstlane_b32 s11, v1'); e('v_and_b32 v2, 63, v0'); e('s_waitcnt lgkmcnt(0)'); e('s_mov_b32 s13, s2')
    else: prologue(e,32)
    e('v_lshlrev_b32 v3, 4, v0')
    for i in range(64):
        e(f'global_load_dwordx4 a[{4*i}:{4*i+3}], v3, s[4:5]'); e('v_add_u32 v3, 4096, v3')
        if i % 16 == 15: e('s_waitcnt vmcnt(0)')
    for i in range(32):
        e(f'global_load_dwordx4 v[{64+4*i}:{67+4*i}], v3, s[4:5]'); e('v_add_u32 v3, 4096, v3')
    e('s_waitcnt vmcnt(0)')
    e('v_lshlrev_b32 v4, 4, v0')
    for i in range(16): e(f'ds_write_b128 v4, v[{64+4*i}:{67+4*i}] offset:{4096*i}')
    e('s_waitcnt lgkmcnt(0)')
    e('v_and_b32 v5, 2, v0'); e('v_cmp_ne_u32 vcc, 0, v5'); e('v_mov_b32 v5, 0x4444'); e('v_mov_b32 v6, 0xeeee'); e('v_cndmask_b32 v16, v5, v6, vcc')
    if amode == 'half':
        e('v_and_b32 v5, 8, v0'); e('v_cmp_eq_u32 vcc, 0, v5')
        for r in range(64,96): e(f'v_cndmask_b32 v{r}, 0, v{r}, vcc')
    if amode == 'zero':
        for r in range(64,96): e(f'v_mov_b32 v{r}, 0')
    e('s_mov_b32 s16, 0')
    e('s_barrier')
    e('s_memtime s[22:23]'); e('s_memrealtime s[26:27]')
    e('L_loop:')
    for r in range(20,44,2): e(f'v_mov_b64 v[{r}:{r+1}], 0')
    for i in range(nop):
        d=20+4*(i%6); a=64+4*((i//6)%8)
        if kind in('sm','smr'): e(f'v_smfmac_f32_16x16x64_bf16 v[{d}:{d+3}], v[{a}:{a+3}], a[{8*(i%32)}:{8*(i%32)+7}], v16')
        if kind=='d16': e(f'v_mfma_f32_16x16x32_bf16 v[{d}:{d+3}], v[{a}:{a+3}], a[{4*(i%64)}:{4*(i%64)+3}], v[{d}:{d+3}]')
        if kind in('r','smr'): e(f'ds_read_b128 v[{128+4*(i%16)}:{131+4*(i%16)}], v4 offset:{4096*(i%16)}')
        if kind=='valu':
            for j in range(4): e(f'v_fma_f32 v{44+(i*4+j)%16}, v{96+(i*4+j)%32}, v{100+(i*3+j)%32}, v{104+(i*5+j)%32}')
        if kind=='none': e('s_nop 3')
    e('s_waitcnt lgkmcnt(0)')
    if sleep: e(f's_sleep {idle//16}')
    else:
        for _ in range(idle//16): e('s_nop 15')
    e('s_barrier')
    e('s_add_u32 s16, s16, 1'); e(f's_cmp_lt_u32 s16, {N}'); e('s_cbranch_scc1 L_loop')
    e('s_memtime s[24:25]'); e('s_memrealtime s[28:29]'); e('s_waitcnt lgkmcnt(0)')
    e('s_sub_u32 s24, s24, s22'); e('s_sub_u32 s28, s28, s26')
    e('s_getreg_b32 s10, hwreg(HW_REG_XCC_ID, 0, 4)')
    e('s_lshl_b32 s14, s13, 4'); e('v_mov_b32 v1, s14'); e('v_mov_b32 v2, s24'); e('v_mov_b32 v3, s28'); e('v_mov_b32 v4, s10')
    e('global_store_dwordx3 v1, v[2:4], s[6:7]')
    e('L_end:')
    return wrap('\n'.join(L), g=256, b=256, lds=100000, nv=512)
if __name__=='__main__':
    cases=[dict(kind='none',idle=480),dict(kind='sm',idle=480),dict(kind='sm',idle=480,sleep=True),dict(kind='sm',idle=0),dict(kind='sm',idle=1200),dict(kind='sm',nop=12,idle=80),dict(kind='sm',idle=480,N=60),dict(kind='sm',idle=480,N=3000),
           dict(kind='sm',idle=480,amode='zero'),dict(kind='d16',idle=480),dict(kind='d16',nop=144,idle=192,amode='half'),dict(kind='r',idle=480),dict(kind='smr',idle=480),dict(kind='valu',idle=480),dict(kind='sm',idle=480,allx=True)]
    if len(sys.argv)>1 and sys.argv[1]=='asm':
        for k in cases: build(gen(**k),'bench_kernel',3,'x')
        print('ok'); sys.exit()
    ws=cl.DeviceBuffer(8<<20); out=cl.DeviceBuffer(8192); dbg=cl.DeviceBuffer(256)
    rng=np.random.default_rng(0)
    upload(ws, ((rng.standard_normal(1<<21).astype(np.float32)*0.1).view(np.uint32)>>16).astype(np.uint16))
    for kw in cases:
        k,g,b,lds=load(gen(**kw),'bench_kernel',3,'x')
        for rep in range(3):
            memset(out,0); memset(dbg,0); sync()
            k.launch(g,b,cl.pack_ptr_kernargs([ws.ptr,out.ptr,dbg.ptr]),lds); sync()
            o=download(out,np.uint32,(256,4)).astype(np.float64)
        N=kw.get('N',300)
        if kw.get('allx'): print(kw, [round(float((o[o[:,2]==x,0]/o[o[:,2]==x,1]).mean()/10),3) for x in range(8)])
        else:
            c=o[:32,0].mean()/N; t=o[:32,1].mean()/N*10
            print(kw,'cyc/iter',round(c),'GHz',round(c/t,3),'stretch cyc/iter',round(2.4*t-c))
        k.unload()
```
